```python
import torch

def _softmax(x, axis=-1):
    return torch.softmax(x, dim=axis)
def _gelu(x):
    return torch.nn.functional.gelu(x, approximate="tanh")
def _silu(x):
    return torch.nn.functional.silu(x)
def _sigmoid(x):
    return torch.sigmoid(x)
def _layernorm(x, axis=-1, eps=1e-5):
    m = x.mean(dim=axis, keepdim=True)
    v = x.var(dim=axis, keepdim=True, unbiased=False)
    return (x - m) / torch.sqrt(v + eps)
def _scatter_add(tgt, idx, src, axis=0):
    return tgt.clone().index_add_(axis, idx, src)
def _segment_sum(src, seg, n):
    out = torch.zeros((n,) + src.shape[1:], dtype=src.dtype)
    return out.index_add_(0, seg, src)
def _pad(x, pw):
    flat = tuple(v for pair in reversed(pw) for v in pair)
    return torch.nn.functional.pad(x, flat)

kernel_name = 'standalone__low_rank_proj_linformer__decode'

def setup_inputs():

    _w = (lambda a: (lambda t: t.to(torch.bfloat16) if t.is_floating_point() else t)(torch.as_tensor(a)))
    B, H, Sq, Skv, Dh, R = 2, 32, 1, 8192, 128, 64
    return {
        "q": _w((lambda *s: torch.randn(*s, dtype=torch.bfloat16) * 0.8)(B, H, Sq, Dh)),
        "k": _w((lambda *s: torch.randn(*s, dtype=torch.bfloat16) * 0.8)(B, H, Skv, Dh)),
        "v": _w((lambda *s: torch.randn(*s, dtype=torch.bfloat16) * 0.05)(B, H, Skv, Dh)),
        "e_proj": _w((lambda *s: torch.randn(*s, dtype=torch.bfloat16) * 0.8)(R, Skv) * (Skv ** -0.5)),
        "f_proj": _w((lambda *s: torch.randn(*s, dtype=torch.bfloat16) * 0.05)(R, Skv) * (Skv ** -0.5)),
    }

def reference(q, k, v, e_proj, f_proj):
    B, H, Sq, Dh = q.shape
    kp = torch.einsum("rn,bhnd->bhrd", e_proj, k)
    vp = torch.einsum("rn,bhnd->bhrd", f_proj, v)
    scores = torch.einsum("bhqd,bhrd->bhqr", q, kp) * (Dh ** -0.5)
    p = _softmax(scores, axis=-1)
    o = torch.einsum("bhqr,bhrd->bhqd", p, vp)
    return o
```

```python
import sys

NAME = "standalone__low_rank_proj_linformer__decode"
SPIN_BOUND = 200000

class Gen:
    def __init__(self):
        self.lines = []
    def e(self, s):
        self.lines.append("    " + s)
    def c(self, s):
        self.lines.append("    ; " + s)
    def lab(self, s):
        self.lines.append(s + ":")
    def text(self):
        return "\n".join(self.lines) + "\n"

def gen(xflags="nt", eflags=""):
    g = Gen()
    e = g.e
    V_LANE, V_G, V_C = 1, 2, 3
    V_OFFX = 4
    V_OFFE = 5
    V_C16 = 9
    V_ZERO, V_ONE = 10, 11
    V_T0 = 12
    V_QF = 16
    V_QRAW = 24
    V_LDSP = 28
    V_LDSR = 29
    V_OFFS = 30
    V_OFFG = 31
    XB = 32
    BB = 160
    V_FLG = 192
    V_GAT = 196
    V_PR = 212
    V_OFFO = 228
    V_OFFF = 229
    V_OFFOUT = 230
    NV = 232
    A_E = 128
    NA = 192
    S_SRDX, S_SRDE, S_SRDV, S_SRDF = 4, 8, 12, 16
    S_SRDW, S_SRDD, S_SRDO = 20, 24, 28
    S_OFFX, S_OFFE, S_IT = 32, 33, 34
    S_SELLO, S_SELHI = 35, 52
    S_PTR = 36
    S_HEAD, S_CHUNK, S_HG, S_WAVE = 53, 54, 55, 56
    S_T = 57
    S_QB = 64
    S_SOFF = 66
    S_OOFF = 67
    S_OOFF2 = 68
    S_CNTOFF = 69
    S_FLGOFF = 70
    S_C0 = 71
    S_EX = 72

    WS_S = 0
    WS_O = 262144
    WS_CNT = 262144 + 524288
    WS_USED = WS_CNT + 8192

    def X(u, i):
        return XB + 32*u + 4*i
    def B(j):
        return BB + 4*j
    def ACC(rb, j):
        return 4*(8*rb + j)
    def AE(u, rb):
        return A_E + 16*u + 4*rb

    g.lines.append(f"{NAME}_kernel:")
    e("s_cmp_ge_u32 s2, 256")
    e("s_cbranch_scc1 L_end")
    e(f"s_load_dwordx16 s[{S_PTR}:{S_PTR+15}], s[0:1], 0")
    e(f"v_and_b32 v{V_LANE}, 63, v0")
    e(f"v_lshrrev_b32 v{V_T0}, 6, v0")
    e(f"v_lshrrev_b32 v{V_G}, 4, v{V_LANE}")
    e(f"v_and_b32 v{V_C}, 15, v{V_LANE}")
    e(f"v_readfirstlane_b32 s{S_WAVE}, v{V_T0}")
    e(f"v_lshlrev_b32 v{V_C16}, 4, v{V_C}")
    e(f"v_lshlrev_b32 v{V_OFFX}, 11, v{V_G}")
    e(f"v_add_u32 v{V_OFFX}, v{V_OFFX}, v{V_C16}")
    e(f"v_lshlrev_b32 v{V_T0}, 4, v{V_G}")
    e(f"v_lshlrev_b32 v{V_T0+1}, 14, v{V_C}")
    e(f"v_add_u32 v{V_OFFE}, v{V_T0+1}, v{V_T0}")
    for rb in range(1, 4):
        e(f"v_add_u32 v{V_OFFE+rb}, 0x{rb*16*16384:x}, v{V_OFFE}")
    e(f"v_mov_b32 v{V_ZERO}, 0")
    e(f"v_mov_b32 v{V_ONE}, 1")
    e(f"v_mov_b32 v{V_OFFS}, v{V_T0}")
    e(f"v_lshlrev_b32 v{V_OFFG}, 8, v{V_G}")
    e(f"v_add_u32 v{V_OFFG}, v{V_OFFG}, v{V_C16}")
    e(f"v_lshlrev_b32 v{V_OFFO}, 5, v{V_C}")
    e(f"v_add_u32 v{V_OFFO}, v{V_OFFO}, v{V_T0}")
    e(f"v_lshrrev_b32 v{V_OFFF}, 5, v{V_LANE}")
    e(f"v_lshlrev_b32 v{V_OFFF}, 9, v{V_OFFF}")
    e(f"v_and_b32 v{V_T0+1}, 31, v{V_LANE}")
    e(f"v_lshlrev_b32 v{V_OFFOUT}, 3, v{V_T0+1}")
    e(f"v_lshlrev_b32 v{V_T0+1}, 4, v{V_T0+1}")
    e(f"v_add_u32 v{V_OFFF}, v{V_OFFF}, v{V_T0+1}")
    e(f"s_lshr_b32 s{S_HG}, s2, 4")
    e(f"s_and_b32 s{S_CHUNK}, s2, 15")
    e(f"s_lshl_b32 s{S_HEAD}, s{S_HG}, 2")
    e(f"s_add_u32 s{S_HEAD}, s{S_HEAD}, s{S_WAVE}")
    e(f"s_mov_b32 s{S_SELLO}, 0x05040100")
    e(f"s_mov_b32 s{S_SELHI}, 0x07060302")
    e(f"s_lshl_b32 s{S_T}, s{S_WAVE}, 8")
    e(f"s_add_u32 s{S_T}, s{S_T}, 256")
    e(f"v_add_u32 v{V_LDSP}, s{S_T}, v{V_C16}")
    e(f"v_add_u32 v{V_LDSR}, s{S_T}, v{V_OFFS}")
    e(f"s_lshl_b32 s{S_SOFF}, s{S_HEAD}, 12")
    e(f"s_lshl_b32 s{S_OOFF}, s{S_HEAD}, 13")
    e(f"s_add_u32 s{S_OOFF}, s{S_OOFF}, {WS_O}")
    e(f"s_add_u32 s{S_OOFF2}, s{S_OOFF}, 4096")
    e(f"s_lshl_b32 s{S_CNTOFF}, s{S_HEAD}, 7")
    e(f"s_add_u32 s{S_CNTOFF}, s{S_CNTOFF}, {WS_CNT}")
    e(f"s_lshl_b32 s{S_FLGOFF}, s{S_HG}, 4")
    e(f"s_mov_b32 s{S_C0}, 0x3e0293ee")
    e(f"s_lshl_b32 s{S_T}, s{S_HEAD}, 21")
    e(f"s_lshl_b32 s{S_T+1}, s{S_CHUNK}, 17")
    e(f"s_or_b32 s{S_T}, s{S_T}, s{S_T+1}")
    e(f"s_lshl_b32 s{S_T+1}, s{S_CHUNK}, 10")
    e("s_waitcnt lgkmcnt(0)")
    q, k, v, eP, fP, out, dbg, ws = [S_PTR + 2*i for i in range(8)]
    def srd(d, base_lo, base_hi, off_sgpr, nrec):
        if off_sgpr is None:
            e(f"s_mov_b32 s{d}, s{base_lo}")
            e(f"s_mov_b32 s{d+1}, s{base_hi}")
        else:
            e(f"s_add_u32 s{d}, s{base_lo}, s{off_sgpr}")
            e(f"s_addc_u32 s{d+1}, s{base_hi}, 0")
        if isinstance(nrec, str):
            e(f"s_mov_b32 s{d+2}, {nrec}")
        else:
            e(f"s_mov_b32 s{d+2}, 0x{nrec:x}")
        e(f"s_mov_b32 s{d+3}, 0x00020000")
    srd(S_SRDX, k, k+1, S_T, 131072)
    srd(S_SRDV, v, v+1, S_T, 131072)
    e(f"s_sub_u32 s{S_T+2}, 0x100000, s{S_T+1}")
    srd(S_SRDE, eP, eP+1, S_T+1, f"s{S_T+2}")
    srd(S_SRDF, fP, fP+1, S_T+1, f"s{S_T+2}")
    srd(S_SRDW, ws, ws+1, None, WS_USED)
    srd(S_SRDD, dbg, dbg+1, None, 256)
    e(f"s_lshl_b32 s{S_T+3}, s{S_HEAD}, 8")
    srd(S_SRDO, out, out+1, S_T+3, 256)
    e(f"s_add_u32 s{S_QB}, s{q}, s{S_T+3}")
    e(f"s_addc_u32 s{S_QB+1}, s{q+1}, 0")
    e(f"ds_write_b32 v{V_ZERO}, v{V_ZERO}")
    e(f"global_load_dwordx4 v[{V_QRAW}:{V_QRAW+3}], v{V_C16}, s[{S_QB}:{S_QB+1}]")
    e(f"s_mov_b32 s{S_OFFX}, 0")
    e(f"s_mov_b32 s{S_OFFE}, 0")
    def issue_x(u):
        for i in range(8):
            e(f"buffer_load_dwordx4 v[{X(u,i)}:{X(u,i)+3}], v{V_OFFX}, s[{S_SRDX}:{S_SRDX+3}], s{S_OFFX} offen offset:{i*256} {xflags}".rstrip())
    def issue_e(u):
        for rb in range(4):
            e(f"buffer_load_dwordx4 a[{AE(u,rb)}:{AE(u,rb)+3}], v{V_OFFE+rb}, s[{S_SRDE}:{S_SRDE+3}], s{S_OFFE} offen {eflags}".rstrip())
    for u in range(4):
        issue_x(u)
        issue_e(u)
        e(f"s_add_u32 s{S_OFFX}, s{S_OFFX}, 8192")
        e(f"s_add_u32 s{S_OFFE}, s{S_OFFE}, 64")
    for n in range(128):
        e(f"v_accvgpr_write_b32 a{n}, 0")
    e("s_waitcnt lgkmcnt(0)")
    e("s_barrier")
    e(f"s_mov_b32 s{S_IT}, 0")

    def step(u, wait, prefetch):
        e(f"s_waitcnt vmcnt({wait})")
        for j in range(8):
            qd, s = j >> 1, j & 1
            sel = S_SELHI if s else S_SELLO
            for m in range(4):
                e(f"v_perm_b32 v{B(j)+m}, v{X(u,2*m+1)+qd}, v{X(u,2*m)+qd}, s{sel}")
        if prefetch:
            issue_x(u)
        else:
            e("s_nop 1")
        for j in range(8):
            for rb in range(4):
                e(f"v_mfma_f32_16x16x32_bf16 a[{ACC(rb,j)}:{ACC(rb,j)+3}], a[{AE(u,rb)}:{AE(u,rb)+3}], v[{B(j)}:{B(j)+3}], a[{ACC(rb,j)}:{ACC(rb,j)+3}]")
        if prefetch:
            issue_e(u)
            e(f"s_add_u32 s{S_OFFX}, s{S_OFFX}, 8192")
            e(f"s_add_u32 s{S_OFFE}, s{S_OFFE}, 64")

    g.lab("L_loop")
    e(f"s_cmp_lg_u32 s{S_IT}, 3")
    e("s_cbranch_scc1 L_body")
    g.c("switch prefetch streams to V / F")
    for i in range(4):
        e(f"s_mov_b32 s{S_SRDX+i}, s{S_SRDV+i}")
        e(f"s_mov_b32 s{S_SRDE+i}, s{S_SRDF+i}")
    e(f"s_mov_b32 s{S_OFFX}, 0")
    e(f"s_mov_b32 s{S_OFFE}, 0")
    g.lab("L_body")
    for u in range(4):
        step(u, 36, True)
    e(f"s_add_u32 s{S_IT}, s{S_IT}, 1")
    e(f"s_cmp_eq_u32 s{S_IT}, 4")
    e("s_cbranch_scc1 L_kepi")
    e(f"s_cmp_eq_u32 s{S_IT}, 5")
    e("s_cbranch_scc1 L_publish")
    e(f"s_cmp_eq_u32 s{S_IT}, 6")
    e("s_cbranch_scc1 L_poll")
    e(f"s_cmp_lt_u32 s{S_IT}, 7")
    e("s_cbranch_scc1 L_loop")
    e("s_branch L_last")

    g.lab("L_kepi")
    e("s_nop 7")
    e("s_nop 7")
    for m in range(4):
        e(f"v_lshlrev_b32 v{V_QF+2*m}, 16, v{V_QRAW+m}")
        e(f"v_and_b32 v{V_QF+2*m+1}, 0xffff0000, v{V_QRAW+m}")
    T = BB
    TMP = BB + 16
    for rb in range(4):
        for j in range(8):
            for i in range(4):
                e(f"v_accvgpr_read_b32 v{TMP+i}, a{ACC(rb,j)+i}")
            for i in range(4):
                e(f"v_accvgpr_write_b32 a{ACC(rb,j)+i}, 0")
            for i in range(4):
                if j == 0:
                    e(f"v_mul_f32 v{T+4*rb+i}, v{TMP+i}, v{V_QF+j}")
                else:
                    e(f"v_fmac_f32 v{T+4*rb+i}, v{TMP+i}, v{V_QF+j}")
    for ror in (8, 4, 2, 1):
        for n in range(16):
            e(f"v_add_f32_dpp v{T+n}, v{T+n}, v{T+n} row_ror:{ror} row_mask:0xf bank_mask:0xf")
    e(f"s_lshl_b32 s{S_T+2}, s{S_CHUNK}, 8")
    e(f"s_add_u32 s{S_T+2}, s{S_T+2}, s{S_SOFF}")
    e("s_mov_b32 exec_lo, 0x00010001")
    e("s_mov_b32 exec_hi, 0x00010001")
    for rb in range(4):
        e(f"buffer_store_dwordx4 v[{T+4*rb}:{T+4*rb+3}], v{V_OFFS}, s[{S_SRDW}:{S_SRDW+3}], s{S_T+2} offen offset:{rb*64} sc1")
    e("s_mov_b64 exec, -1")
    e(f"s_cmp_lg_u32 s{S_CHUNK}, 0")
    e("s_cbranch_scc1 L_loop")
    e("s_mov_b64 exec, 1")
    e(f"buffer_store_dword v{V_ZERO}, v{V_ZERO}, s[{S_SRDW}:{S_SRDW+3}], s{S_CNTOFF} offen sc1")
    e("s_mov_b64 exec, -1")
    e("s_branch L_loop")

    g.lab("L_publish")
    e("s_waitcnt vmcnt(48)")
    e("s_mov_b64 exec, 1")
    e(f"ds_add_rtn_u32 v{V_T0}, v{V_ZERO}, v{V_ONE}")
    e("s_waitcnt lgkmcnt(0)")
    e(f"v_readfirstlane_b32 s{S_T}, v{V_T0}")
    e(f"s_cmp_lg_u32 s{S_T}, 3")
    e("s_cbranch_scc1 L_pub_done")
    e(f"s_add_u32 s{S_T+1}, s{S_FLGOFF}, s{S_CHUNK}")
    e(f"buffer_store_byte v{V_ONE}, v{V_ZERO}, s[{S_SRDD}:{S_SRDD+3}], s{S_T+1} offen sc1")
    g.lab("L_pub_done")
    e("s_mov_b64 exec, -1")
    e("s_branch L_loop")

    g.lab("L_poll")
    e(f"buffer_load_dwordx4 v[{V_FLG}:{V_FLG+3}], v{V_ZERO}, s[{S_SRDD}:{S_SRDD+3}], s{S_FLGOFF} offen sc1")
    e("s_branch L_loop")

    g.lab("L_last")
    e("s_waitcnt vmcnt(48)")
    e(f"s_mov_b32 s{S_T+4}, 0")
    g.lab("L_check")
    e(f"v_and_b32 v{V_T0}, v{V_FLG}, v{V_FLG+1}")
    e(f"v_and_b32 v{V_T0+1}, v{V_FLG+2}, v{V_FLG+3}")
    e(f"v_and_b32 v{V_T0}, v{V_T0}, v{V_T0+1}")
    e(f"v_cmp_eq_u32 vcc, 0x01010101, v{V_T0}")
    e("s_cbranch_vccnz L_ready")
    e(f"s_add_u32 s{S_T+4}, s{S_T+4}, 1")
    e(f"s_cmp_gt_u32 s{S_T+4}, {SPIN_BOUND}")
    e("s_cbranch_scc1 L_ready")
    e(f"buffer_load_dwordx4 v[{V_FLG}:{V_FLG+3}], v{V_ZERO}, s[{S_SRDD}:{S_SRDD+3}], s{S_FLGOFF} offen sc1")
    e("s_waitcnt vmcnt(0)")
    e("s_branch L_check")
    g.lab("L_ready")
    for kk in range(4):
        e(f"buffer_load_dwordx4 v[{V_GAT+4*kk}:{V_GAT+4*kk+3}], v{V_OFFG}, s[{S_SRDW}:{S_SRDW+3}], s{S_SOFF} offen offset:{kk*1024} sc1")
    step(0, 36+4, False)
    step(1, 24+4, False)
    step(2, 12+4, False)
    step(3, 4, False)
    e("s_waitcnt vmcnt(0)")
    S = BB
    TM = BB + 4
    for i in range(4):
        e(f"v_add_f32 v{S+i}, v{V_GAT+i}, v{V_GAT+4+i}")
        e(f"v_add_f32 v{TM+i}, v{V_GAT+8+i}, v{V_GAT+12+i}")
    for i in range(4):
        e(f"v_add_f32 v{S+i}, v{S+i}, v{TM+i}")
    def xrow_sum(regs, tmps):
        for swap in ("v_permlane16_swap_b32", "v_permlane32_swap_b32"):
            for r, t in zip(regs, tmps):
                e(f"v_mov_b32 v{t}, v{r}")
            e("s_nop 1")
            for r, t in zip(regs, tmps):
                e(f"{swap} v{r}, v{t}")
            for r, t in zip(regs, tmps):
                e(f"v_add_f32 v{r}, v{r}, v{t}")
    xrow_sum([S+i for i in range(4)], [TM+i for i in range(4)])
    for i in range(4):
        e(f"v_mul_f32 v{S+i}, s{S_C0}, v{S+i}")
    MX = TM
    e(f"v_max_f32 v{MX}, v{S}, v{S+1}")
    e(f"v_max_f32 v{MX+1}, v{S+2}, v{S+3}")
    e(f"v_max_f32 v{MX}, v{MX}, v{MX+1}")
    for ror in (8, 4, 2, 1):
        e("s_nop 1")
        e(f"v_max_f32_dpp v{MX}, v{MX}, v{MX} row_ror:{ror} row_mask:0xf bank_mask:0xf")
    for i in range(4):
        e(f"v_sub_f32 v{S+i}, v{S+i}, v{MX}")
    for i in range(4):
        e(f"v_exp_f32 v{S+i}, v{S+i}")
    L = TM + 1
    e("s_nop 0")
    e(f"v_add_f32 v{L}, v{S}, v{S+1}")
    e(f"v_add_f32 v{L+1}, v{S+2}, v{S+3}")
    e(f"v_add_f32 v{L}, v{L}, v{L+1}")
    for ror in (8, 4, 2, 1):
        e("s_nop 1")
        e(f"v_add_f32_dpp v{L}, v{L}, v{L} row_ror:{ror} row_mask:0xf bank_mask:0xf")
    e(f"v_rcp_f32 v{L+1}, v{L}")
    e("s_nop 0")
    e(f"v_fma_f32 v{L+2}, -v{L}, v{L+1}, 2.0")
    e(f"v_mul_f32 v{L+1}, v{L+1}, v{L+2}")
    for i in range(4):
        e(f"v_mul_f32 v{S+i}, v{S+i}, v{L+1}")
    e(f"ds_write_b128 v{V_LDSP}, v[{S}:{S+3}]")
    e("s_waitcnt lgkmcnt(0)")
    for rb in range(4):
        e(f"ds_read_b128 v[{V_PR+4*rb}:{V_PR+4*rb+3}], v{V_LDSR} offset:{rb*64}")
    e("s_waitcnt lgkmcnt(0)")
    O = BB
    TP = BB + 8
    for rb in range(4):
        for j in range(8):
            for i in range(4):
                e(f"v_accvgpr_read_b32 v{TP+i}, a{ACC(rb,j)+i}")
            for i in range(4):
                if rb == 0 and i == 0:
                    e(f"v_mul_f32 v{O+j}, v{TP+i}, v{V_PR+4*rb+i}")
                else:
                    e(f"v_fmac_f32 v{O+j}, v{TP+i}, v{V_PR+4*rb+i}")
    xrow_sum([O+j for j in range(8)], [BB+16+j for j in range(8)])
    W = BB + 24
    e(f"v_cmp_eq_u32 vcc, 1, v{V_G}")
    e("s_nop 1")
    for i in range(4):
        e(f"v_cndmask_b32 v{W+i}, v{O+i}, v{O+4+i}, vcc")
    e(f"s_lshl_b32 s{S_T}, s{S_CHUNK}, 9")
    e(f"s_add_u32 s{S_T}, s{S_T}, s{S_OOFF}")
    e("s_mov_b32 exec_lo, -1")
    e("s_mov_b32 exec_hi, 0")
    e(f"buffer_store_dwordx4 v[{W}:{W+3}], v{V_OFFO}, s[{S_SRDW}:{S_SRDW+3}], s{S_T} offen sc1")
    e("s_waitcnt vmcnt(0)")
    e("s_mov_b64 exec, 1")
    e(f"v_mov_b32 v{V_T0}, 1")
    e(f"buffer_atomic_add v{V_T0}, v{V_ZERO}, s[{S_SRDW}:{S_SRDW+3}], s{S_CNTOFF} offen sc0")
    e("s_waitcnt vmcnt(0)")
    e(f"v_readfirstlane_b32 s{S_T}, v{V_T0}")
    e("s_mov_b64 exec, -1")
    e(f"s_cmp_lg_u32 s{S_T}, 15")
    e("s_cbranch_scc1 L_end")
    GG = BB
    for kk in range(8):
        so = S_OOFF if kk < 4 else S_OOFF2
        e(f"buffer_load_dwordx4 v[{GG+4*kk}:{GG+4*kk+3}], v{V_OFFF}, s[{S_SRDW}:{S_SRDW+3}], s{so} offen offset:{(kk&3)*1024} sc1")
    e("s_waitcnt vmcnt(0)")
    for kk in range(1, 8):
        for i in range(4):
            e(f"v_add_f32 v{GG+i}, v{GG+i}, v{GG+4*kk+i}")
    for i in range(4):
        e(f"v_mov_b32 v{GG+4+i}, v{GG+i}")
    e("s_nop 1")
    for i in range(4):
        e(f"v_permlane32_swap_b32 v{GG+i}, v{GG+4+i}")
    for i in range(4):
        e(f"v_add_f32 v{GG+i}, v{GG+i}, v{GG+4+i}")
    e(f"v_cvt_pk_bf16_f32 v{GG+8}, v{GG}, v{GG+1}")
    e(f"v_cvt_pk_bf16_f32 v{GG+9}, v{GG+2}, v{GG+3}")
    e("s_mov_b32 exec_lo, -1")
    e("s_mov_b32 exec_hi, 0")
    e(f"buffer_store_dwordx2 v[{GG+8}:{GG+9}], v{V_OFFOUT}, s[{S_SRDO}:{S_SRDO+3}], 0 offen")
    g.lab("L_end")
    e("s_endpgm")
    return g, NV, NA

HEADER = """; Kernarg layout for this problem (64 bytes, ptrs only, base s[0:1]):
; @launch grid=(256,1,1) block=(256,1,1) lds=2048
.amdgcn_target "amdgcn-amd-amdhsa--gfx950"
.text
.globl {name}_kernel
.p2align 8
.type {name}_kernel,@function
"""
FOOTER = """.section .rodata,"a"
.p2align 6
.amdhsa_kernel {name}_kernel
  .amdhsa_next_free_vgpr {nfv}
  .amdhsa_next_free_sgpr 102
  .amdhsa_accum_offset {acc}
  .amdhsa_group_segment_fixed_size 0
  .amdhsa_kernarg_size 64
  .amdhsa_user_sgpr_count 2
  .amdhsa_user_sgpr_kernarg_segment_ptr 1
  .amdhsa_system_sgpr_workgroup_id_x 1
.end_amdhsa_kernel
"""

if __name__ == "__main__":
    import struct, math
    out = sys.argv[1] if len(sys.argv) > 1 else f"cdna_kernels/{NAME}.s"
    xflags = sys.argv[2] if len(sys.argv) > 2 else "nt"
    if xflags == "none": xflags = ""
    g, nv, na = gen(xflags=xflags)
    c0 = (128 ** -0.5) * math.log2(math.e)
    c0bits = struct.unpack("<I", struct.pack("<f", c0))[0]
    body = g.text().replace("0x3e0293ee", f"0x{c0bits:08x}")
    acc = (nv + 3) // 4 * 4
    with open(out, "w") as f:
        f.write(HEADER.format(name=NAME))
        f.write(body)
        f.write(FOOTER.format(name=NAME, nfv=acc + na, acc=acc))
    print("wrote", out, "lines", len(g.lines), "vgpr", nv, "agpr", na)
```
